```python
import torch

def _softmax(x, axis=-1):
    return torch.softmax(x, dim=axis)
def _gelu(x):
    return torch.nn.functional.gelu(x, approximate="tanh")
def _silu(x):
    return torch.nn.functional.silu(x)
def _sigmoid(x):
    return torch.sigmoid(x)
def _layernorm(x, axis=-1, eps=1e-5):
    m = x.mean(dim=axis, keepdim=True)
    v = x.var(dim=axis, keepdim=True, unbiased=False)
    return (x - m) / torch.sqrt(v + eps)
def _scatter_add(tgt, idx, src, axis=0):
    return tgt.clone().index_add_(axis, idx, src)
def _segment_sum(src, seg, n):
    out = torch.zeros((n,) + src.shape[1:], dtype=src.dtype)
    return out.index_add_(0, seg, src)
def _pad(x, pw):
    flat = tuple(v for pair in reversed(pw) for v in pair)
    return torch.nn.functional.pad(x, flat)

kernel_name = 'concat_heads__softmax_full_mha__ssm_conv_s5__prompt'

def setup_inputs():

    _w = (lambda a: (lambda t: t.to(torch.bfloat16) if t.is_floating_point() else t)(torch.as_tensor(a)))
    def _A_setup():
        B, S, D = 1, 2048, 512
        return {
            "x": _w((lambda *s: torch.randn(*s, dtype=torch.bfloat16) * 0.2)(B, S, D)),
            "wqkv": _w((lambda *s: torch.randn(*s, dtype=torch.bfloat16) * 0.2)(D, 3 * D)),
            "wo": _w((lambda *s: torch.randn(*s, dtype=torch.bfloat16) * 0.05)(D, D)),
        }
    _A_in = _A_setup()

    def _B_setup():
        B, S, D = 1, 2048, 512
        P = D
        Lambda_re = -0.5 * (lambda _x: torch.exp(torch.as_tensor(_x)))((lambda *s: torch.randn(*s, dtype=torch.bfloat16) * 0.4)(P))
        Lambda_im = (lambda *s: torch.randn(*s, dtype=torch.bfloat16) * 0.8)(P) * 1.0
        B_re = (lambda *s: torch.randn(*s, dtype=torch.bfloat16) * 0.8)(P, D) * (D ** -0.5)
        B_im = (lambda *s: torch.randn(*s, dtype=torch.bfloat16) * 0.8)(P, D) * (D ** -0.5)
        C_re = (lambda *s: torch.randn(*s, dtype=torch.bfloat16) * 0.8)(D, P) * (P ** -0.5)
        C_im = (lambda *s: torch.randn(*s, dtype=torch.bfloat16) * 0.4)(D, P) * (P ** -0.5)
        log_dt = (lambda *s: torch.randn(*s, dtype=torch.bfloat16) * 0.4)(P) * 0.3 - 2.0
        Dskip = (lambda *s: torch.randn(*s, dtype=torch.bfloat16) * 0.1)(D)
        return {
            "x": _w((lambda *s: torch.randn(*s, dtype=torch.bfloat16) * 0.05)(B, S, D)),
            "Lambda_re": _w(Lambda_re),
            "Lambda_im": _w(Lambda_im),
            "B_re": _w(B_re),
            "B_im": _w(B_im),
            "C_re": _w(C_re),
            "C_im": _w(C_im),
            "log_dt": _w(log_dt),
            "Dskip": _w(Dskip),
        }
    _B_in = _B_setup()

    return {
        "A_x": _A_in["x"],
        "A_wqkv": _A_in["wqkv"],
        "A_wo": _A_in["wo"],
        "B_x": _B_in["x"],
        "B_Lambda_re": _B_in["Lambda_re"],
        "B_Lambda_im": _B_in["Lambda_im"],
        "B_B_re": _B_in["B_re"],
        "B_B_im": _B_in["B_im"],
        "B_C_re": _B_in["C_re"],
        "B_C_im": _B_in["C_im"],
        "B_log_dt": _B_in["log_dt"],
        "B_Dskip": _B_in["Dskip"],
    }

def reference(A_x, A_wqkv, A_wo, B_x, B_Lambda_re, B_Lambda_im, B_B_re, B_B_im, B_C_re, B_C_im, B_log_dt, B_Dskip):
    def _A_ref(x, wqkv, wo):
        B, S, D = x.shape
        H = 32; Dh = D // H
        qkv = (lambda x, *d: x.permute(*d))((x @ wqkv).reshape(B, S, 3, H, Dh), 2, 0, 3, 1, 4)
        q, k, v = qkv[0], qkv[1], qkv[2]
        scale = Dh ** -0.5
        scores = torch.einsum("bhqd,bhkd->bhqk", q, k) * scale
        p = _softmax(scores, axis=-1)
        o = torch.einsum("bhqk,bhkd->bhqd", p, v)
        return (lambda x, *d: x.permute(*d))(o, 0, 2, 1, 3).reshape(B, S, D) @ wo

    def _B_ref(x, Lambda_re, Lambda_im, B_re, B_im, C_re, C_im, log_dt, Dskip):
        Bsz, L, H = x.shape
        Lam = Lambda_re + 1j * Lambda_im
        Bmat = B_re + 1j * B_im
        Cmat = C_re + 1j * C_im
        dt = torch.exp(log_dt)
        Lam_bar = torch.exp(dt * Lam)
        B_bar = ((Lam_bar - 1.0) / Lam)[:, None] * Bmat
        Bu = torch.einsum("bld,pd->blp", x + 0j, B_bar)
        h = torch.zeros_like(Bu[:, 0, :])
        hs = []
        for t in range(L):
            h = Lam_bar[None, :] * h + Bu[:, t, :]
            hs.append(h)
        hseq = torch.stack(hs, 1)
        y = 2.0 * torch.einsum("blp,dp->bld", hseq, Cmat).real + x * Dskip[None, None, :]
        return y

    a = _A_ref(A_x, A_wqkv, A_wo)
    b = _B_ref(B_x, B_Lambda_re, B_Lambda_im, B_B_re, B_B_im, B_C_re, B_C_im, B_log_dt, B_Dskip)
    return torch.concatenate([a, b], axis=-1)
```

```python
import re

TRANS = ("v_exp_f32", "v_log_f32", "v_rcp_f32", "v_rsq_f32", "v_sqrt_f32", "v_sin_f32", "v_cos_f32",
         "v_rcp_iflag_f32", "v_exp_f16", "v_rcp_f16")
REG_RE = re.compile(r"^(-|abs\()?([vas])(\d+|\[(\d+):(\d+)\])\)?$")


def parse_reg(tok):
    t = tok.strip()
    if t.startswith("-"):
        t = t[1:]
    if t.startswith("abs(") and t.endswith(")"):
        t = t[4:-1]
    if t.startswith("|") and t.endswith("|"):
        t = t[1:-1]
    if t == "vcc":
        return [("s", "vcc_lo"), ("s", "vcc_hi")]
    if t in ("vcc_lo", "vcc_hi", "m0", "exec_lo", "exec_hi", "scc"):
        return [("s", t)]
    if t == "exec":
        return [("s", "exec_lo"), ("s", "exec_hi")]
    m = re.match(r"^([vas])(\d+)$", t)
    if m:
        return [(m.group(1), int(m.group(2)))]
    m = re.match(r"^([vas])\[(\d+):(\d+)\]$", t)
    if m:
        return [(m.group(1), i) for i in range(int(m.group(2)), int(m.group(3)) + 1)]
    return []


def split_ops(s):
    out, depth, cur = [], 0, ""
    for ch in s:
        if ch in "[(":
            depth += 1
        elif ch in "])":
            depth -= 1
        if ch == "," and depth == 0:
            out.append(cur.strip())
            cur = ""
        else:
            cur += ch
    if cur.strip():
        out.append(cur.strip())
    return out


def mfma_passes(op):
    if "32x32x16" in op or "32x32x8" in op or "32x32x32" in op:
        return 8
    if "16x16x32" in op or "16x16x16" in op:
        return 4
    raise ValueError("unknown mfma " + op)


class Ins:
    __slots__ = ("text", "op", "kind", "defs", "uses", "mods", "ops", "tag", "srcC", "srcAB", "note")

    def __init__(self, text, tag=None):
        self.text = text
        self.tag = tag
        self.note = None
        t = text.split(";")[0].strip()
        parts = t.split(None, 1)
        self.op = parts[0]
        rest = parts[1] if len(parts) > 1 else ""
        ops = split_ops(rest)
        mods = ""
        if ops:
            last = ops[-1]
            depth = 0
            cut = None
            for i, ch in enumerate(last):
                if ch in "[(":
                    depth += 1
                elif ch in "])":
                    depth -= 1
                elif ch == " " and depth == 0:
                    cut = i
                    break
            if cut is not None:
                mods = last[cut + 1:]
                ops[-1] = last[:cut]
        self.ops, self.mods = ops, mods
        self.srcC, self.srcAB = [], []
        op = self.op
        R = lambda i: parse_reg(ops[i]) if i < len(ops) else []
        allr = lambda lo: [r for i in range(lo, len(ops)) for r in R(i)]
        defs, uses = [], []
        if op.startswith("v_mfma") or op.startswith("v_smfmac"):
            kind = "mfma"
            defs = R(0)
            self.srcAB = R(1) + R(2)
            self.srcC = R(3) if op.startswith("v_mfma") else R(0)
            uses = self.srcAB + self.srcC + (R(3) if op.startswith("v_smfmac") else [])
        elif op.startswith("v_cmpx"):
            kind = "valu"
            defs = R(0) + parse_reg("exec")
            uses = allr(1)
        elif op.startswith("v_cmp"):
            kind = "valu"
            defs = R(0)
            uses = allr(1)
        elif op.startswith("v_readfirstlane") or op.startswith("v_readlane"):
            kind = "valu"
            defs = R(0)
            uses = allr(1)
        elif op.startswith("v_permlane") and "swap" in op:
            kind = "valu"
            defs = R(0) + R(1)
            uses = R(0) + R(1)
        elif op.startswith("v_"):
            kind = "valu"
            defs = R(0)
            lo = 1
            if re.match(r"v_(add|sub|subrev|addc|subb|subbrev)_co_u32", op) or op.startswith("v_div_scale") \
                    or op.startswith("v_mad_u64_u32"):
                defs += R(1)
                lo = 2
            uses = allr(lo)
            if op.startswith(("v_fmac", "v_mac", "v_pk_fmac", "v_writelane", "v_dot2c")) or "dpp" in op or "sdwa" in op \
                    or "quad_perm" in mods or "row_" in mods:
                uses += R(0)
            if op.startswith("v_cndmask") and len(ops) == 3:
                uses += parse_reg("vcc")
            if op.startswith("v_div_fmas"):
                uses += parse_reg("vcc")
        elif op.startswith("ds_read") or op.startswith("ds_bpermute") or op.startswith("ds_permute") \
                or op.startswith("ds_swizzle") or (op.startswith("ds_") and "_rtn" in op):
            kind = "ds"
            defs = R(0)
            uses = allr(1)
        elif op.startswith("ds_"):
            kind = "ds"
            uses = allr(0)
        elif op.startswith("buffer_") or op.startswith("global_"):
            kind = "vm"
            is_lds = re.search(r"\blds\b", mods) is not None or "load_lds" in op
            if op in ("buffer_inv", "buffer_wbl2"):
                pass
            elif "load" in op and not is_lds:
                defs = R(0)
                uses = allr(1)
            elif "atomic" in op and re.search(r"\bsc0\b", mods):
                if op.startswith("buffer_"):
                    defs = R(0)
                    uses = allr(0)
                else:
                    defs = R(0)
                    uses = allr(1)
            else:
                uses = allr(0)
                if is_lds:
                    uses += [("s", "m0")]
        elif op in ("s_load_dword", "s_load_dwordx2", "s_load_dwordx4", "s_load_dwordx8", "s_load_dwordx16",
                    "s_memtime", "s_memrealtime"):
            kind = "smem"
            defs = R(0)
            uses = allr(1)
        elif op.startswith("s_"):
            kind = "salu"
            if op.startswith(("s_cmp", "s_cbranch", "s_branch", "s_waitcnt", "s_nop", "s_barrier", "s_endpgm",
                              "s_setprio", "s_sleep", "s_bitcmp", "s_setreg")):
                uses = allr(0)
                if op == "s_cbranch_vccnz" or op == "s_cbranch_vccz":
                    uses = parse_reg("vcc")
            else:
                defs = R(0)
                uses = allr(1)
                if "saveexec" in op:
                    defs += parse_reg("exec")
                    uses += parse_reg("exec")
                if op.startswith(("s_addk", "s_mulk", "s_cmov", "s_bitset")):
                    uses += R(0)
        else:
            raise ValueError("cannot classify: " + text)
        self.kind, self.defs, self.uses = kind, defs, uses

    def is_trans(self):
        o = self.op.replace("_e32", "").replace("_e64", "")
        return o in TRANS

    def is_dpp(self):
        return "dpp" in self.op or "quad_perm" in self.mods or "row_" in self.mods

    def wide_store(self):
        return self.kind == "vm" and "store" in self.op and ("x3" in self.op or "x4" in self.op)

    def states(self):
        if self.op == "s_nop":
            return int(self.ops[0], 0) + 1
        return 1


class Label:
    def __init__(self, name):
        self.name = name


class Raw:
    def __init__(self, text):
        self.text = text


class K:
    def __init__(self):
        self.items = []
        self.uid = 0
        self.stats = {}

    def __call__(self, text, tag=None):
        for line in text.split("\n"):
            line = line.strip()
            if not line or line.startswith(";"):
                continue
            self.items.append(Ins(line, tag))

    def label(self, name):
        self.items.append(Label(name))

    def raw(self, text):
        self.items.append(Raw(text))

    def comment(self, text):
        self.items.append(Raw("; " + text))

    def newlabel(self, stem):
        self.uid += 1
        return f"L{stem}_{self.uid}"

    def wait_vm(self, tag):
        self.items.append(("waitvm", tag))

    def flush(self):
        self("s_waitcnt vmcnt(0) lgkmcnt(0)")

    def mark(self, name):
        self.items.append(("mark", name))

    def snapshot(self):
        self.uid += 1
        self.items.append(("snap", self.uid))
        return self.uid

    def restore(self, snap):
        self.items.append(("restore", snap))

    def finalize(self):
        out = []
        lg = []
        vm = []
        hist = []
        nops = 0
        region = "start"
        stats = {}
        snaps = {}

        def push(ins):
            out.append(ins)
            hist.append(ins)
            if len(hist) > 40:
                hist.pop(0)

        def emit_wait(vmn=None, lgn=None):
            parts = []
            if vmn is not None:
                assert vmn <= 63
                parts.append(f"vmcnt({vmn})")
                del vm[:max(0, len(vm) - vmn)]
            if lgn is not None:
                assert lgn <= 15
                parts.append(f"lgkmcnt({lgn})")
                if lgn == 0:
                    lg.clear()
                else:
                    while sum(e[2] for e in lg) > lgn:
                        lg.pop(0)
            push(Ins("s_waitcnt " + " ".join(parts)))

        def need_states(ins):
            need = 0
            dist = 0
            U = set(ins.uses)
            D = set(ins.defs)
            for p in reversed(hist):
                req = 0
                PD = set(p.defs)
                if p.kind == "mfma":
                    n = mfma_passes(p.op)
                    touch = PD & (U | D)
                    if touch:
                        if ins.kind == "mfma":
                            cset = set(ins.srcC)
                            ab = set(ins.srcAB)
                            if PD & ab:
                                req = max(req, {4: 8, 8: 12}[n])
                            if PD & cset:
                                same = (cset == PD) and mfma_passes(ins.op) == n
                                if not same:
                                    req = max(req, {4: 6, 8: 10}[n])
                            if (PD & D) and not (PD & cset):
                                same = (set(ins.defs) == PD)
                                req = max(req, 0 if False else {4: 6, 8: 10}[n] if not same else {4: 6, 8: 10}[n])
                        elif ins.kind in ("valu", "vm", "ds"):
                            req = max(req, {4: 8, 8: 12}[n])
                    if ins.kind == "valu" and (set(p.srcC) & D):
                        req = max(req, {4: 3, 8: 7}[n])
                elif p.kind == "valu":
                    vdefs = {r for r in PD if r[0] in "va"}
                    sdefs = {r for r in PD if r[0] == "s"}
                    if ins.kind == "mfma" and (vdefs & U):
                        req = max(req, 2)
                    if ins.kind == "valu":
                        if p.is_trans() and not ins.is_trans() and (vdefs & (U | D)):
                            req = max(req, 1)
                        if p.is_trans() and ins.is_trans() and (vdefs & U):
                            req = max(req, 1)
                        if ins.is_dpp() and (vdefs & U):
                            req = max(req, 2)
                        if ins.op.startswith(("v_readlane", "v_readfirstlane")) and (vdefs & U):
                            req = max(req, 1)
                        if ins.op.startswith("v_permlane") and (vdefs & U):
                            req = max(req, 2)
                        if sdefs & U:
                            req = max(req, 2)
                            if ins.op.startswith(("v_readlane", "v_writelane")):
                                req = max(req, 4)
                            if ins.op.startswith("v_div_fmas"):
                                req = max(req, 4)
                        if ("s", "exec_lo") in sdefs:
                            if ins.is_dpp():
                                req = max(req, 5)
                            if ins.op.startswith(("v_readlane", "v_readfirstlane", "v_writelane", "v_permlane")):
                                req = max(req, 4)
                    if ins.kind == "mfma" and ("s", "exec_lo") in sdefs:
                        req = max(req, 4)
                    if ins.kind == "vm" and (sdefs & U):
                        req = max(req, 5)
                    if ins.kind == "salu" and (sdefs & U):
                        req = max(req, 4)
                    if ins.kind == "smem" and (sdefs & U):
                        req = max(req, 5)
                elif p.kind == "vm":
                    if p.wide_store() and (set(p.uses) & {r for r in D if r[0] in "va"}):
                        req = max(req, 2)
                elif p.kind == "salu":
                    if ("s", "m0") in PD and ins.kind == "vm" and ("s", "m0") in U:
                        req = max(req, 1)
                    if ("s", "exec_lo") in PD and ins.is_dpp() and ins.kind == "valu":
                        req = max(req, 0)
                need = max(need, req - dist)
                dist += p.states()
                if dist >= 24:
                    break
            return need

        for it in self.items:
            if isinstance(it, (Label, Raw)):
                out.append(it)
                continue
            if isinstance(it, tuple):
                if it[0] == "mark":
                    region = it[1]
                    out.append(Raw("; ---- " + it[1]))
                    continue
                if it[0] == "snap":
                    snaps[it[1]] = ([[set(e[0]), e[1], e[2]] for e in lg], [[set(e[0]), e[1]] for e in vm], list(hist))
                    continue
                if it[0] == "restore":
                    a, b, c = snaps[it[1]]
                    lg[:] = [[set(e[0]), e[1], e[2]] for e in a]
                    vm[:] = [[set(e[0]), e[1]] for e in b]
                    hist[:] = list(c)
                    continue
                if it[0] == "waitvm":
                    idx = [i for i, e in enumerate(vm) if e[1] == it[1]]
                    if idx:
                        emit_wait(vmn=len(vm) - 1 - idx[-1])
                    continue
            ins = it
            touched = set(ins.uses) | set(ins.defs)
            if ins.op == "s_waitcnt":
                txt = ins.text
                m = re.search(r"vmcnt\((\d+)\)", txt)
                if m:
                    n = int(m.group(1))
                    del vm[:max(0, len(vm) - n)]
                m = re.search(r"lgkmcnt\((\d+)\)", txt)
                if m:
                    n = int(m.group(1))
                    if n == 0:
                        lg.clear()
                    elif not any(e[1] for e in lg):
                        while sum(e[2] for e in lg) > n:
                            lg.pop(0)
                push(ins)
                continue
            vneed = None
            for i, e in enumerate(vm):
                if e[0] & touched:
                    vneed = len(vm) - 1 - i
            lneed = None
            for i, e in enumerate(lg):
                if e[0] & touched:
                    if any(x[1] for x in lg):
                        lneed = 0
                    else:
                        n = sum(x[2] for x in lg[i + 1:])
                        lneed = n if lneed is None else min(lneed, n)
            if lneed is not None and lneed > 15:
                lneed = 15
            if vneed is not None or lneed is not None:
                emit_wait(vneed, lneed)
            if ins.kind == "vm" and len(vm) >= 63:
                emit_wait(vmn=62)
            n = need_states(ins)
            if n > 0:
                nops += n
                stats[region] = stats.get(region, 0) + n
                while n > 0:
                    c = min(n, 16)
                    push(Ins(f"s_nop {c - 1}"))
                    n -= c
            push(ins)
            if ins.kind == "ds":
                lg.append([set(ins.defs), False, 1])
            elif ins.kind == "smem":
                w = 1 if ins.op == "s_load_dword" else 2
                lg.append([set(ins.defs), True, w])
            elif ins.kind == "vm":
                vm.append([set(ins.defs), ins.tag])
        self.stats = stats
        self.final = out
        lines = []
        for it in out:
            if isinstance(it, Label):
                lines.append(it.name + ":")
            elif isinstance(it, Raw):
                lines.append(it.text)
            else:
                lines.append("    " + it.text)
        return "\n".join(lines)
```

```python
from asmlib import K

KA = dict(AX=0, WQKV=8, WO=16, BX=24, LRE=32, LIM=40, BRE=48, BIM=56, CRE=64, CIM=72, LDT=80, DSK=88, OUT=96, DBG=104, WS=112)
SIZES = dict(AX=2048*512*2, WQKV=512*1536*2, WO=512*512*2, BX=2048*512*2, LRE=1024, LIM=1024, BRE=512*512*2, BIM=512*512*2,
             CRE=512*512*2, CIM=512*512*2, LDT=1024, DSK=1024, OUT=2048*1024*4, DBG=256, WS=16*1024*1024)

WS_KV = 0
WS_QF = 4 << 20
WS_OF = 6 << 20
WS_H = 8 << 20
WS_E = 12 << 20
WS_FLAG = 13 << 20
WS_STAMP = 14 << 20

QSCALE = 0.25 * 1.4426950408889634


def f2u(x):
    import struct
    return struct.unpack("<I", struct.pack("<f", x))[0]


def vr(base, n=1):
    return f"v{base}" if n == 1 else f"v[{base}:{base + n - 1}]"


def sr(base, n=1):
    return f"s{base}" if n == 1 else f"s[{base}:{base + n - 1}]"


def load_srds(k, want):
    for name, sb in want:
        k(f"s_load_dwordx2 s[{sb}:{sb + 1}], s[0:1], {KA[name]}")
    for name, sb in want:
        k(f"s_mov_b32 s{sb + 2}, {SIZES[name]:#x}")
        k(f"s_mov_b32 s{sb + 3}, 0x00020000")


def kernel_header(name):
    return f""".text
.globl {name}
.p2align 8
.type {name},@function
"""


def kernel_desc(name, vgpr, sgpr=96, accum=None):
    accum = accum or ((vgpr + 3) // 4 * 4)
    return f""".section .rodata,"a"
.p2align 6
.amdhsa_kernel {name}
  .amdhsa_next_free_vgpr {vgpr}
  .amdhsa_next_free_sgpr {sgpr}
  .amdhsa_accum_offset {accum}
  .amdhsa_group_segment_fixed_size 0
  .amdhsa_kernarg_size 120
  .amdhsa_user_sgpr_count 2
  .amdhsa_user_sgpr_kernarg_segment_ptr 1
  .amdhsa_system_sgpr_workgroup_id_x 1
  .amdhsa_float_denorm_mode_32 3
.end_amdhsa_kernel
"""
```

```python
from asmlib import K
from common import *

S_W, S_HP, S_RB, S_T0 = 4, 5, 6, 7
SRD_AX, SRD_W, SRD_WS, SRD_OUT, SRD_BX, SRD_BRE, SRD_BIM, SRD_CRE, SRD_CIM, SRD_WO = 8, 12, 16, 20, 24, 28, 32, 36, 40, 44
P_LRE, P_LIM, P_LDT, P_DSK = 48, 50, 52, 54
S_T1, S_T2, S_T3 = 56, 57, 58
S_A, S_B, S_C, S_D, S_E, S_F = 60, 61, 62, 63, 64, 65
S_MASKV = 66
S_WGB = 68

V_TID, V_L = 0, 1


def srd(b):
    return f"s[{b}:{b + 3}]"


def prologue(k, srds, ptrs=()):
    k("s_cmp_ge_u32 s2, 256")
    k("s_cbranch_scc1 " + k.exit_label)
    for name, sb in srds:
        k(f"s_load_dwordx2 s[{sb}:{sb + 1}], s[0:1], {KA[name]}")
    for name, sb in ptrs:
        k(f"s_load_dwordx2 s[{sb}:{sb + 1}], s[0:1], {KA[name]}")
    k(f"v_lshrrev_b32 v2, 6, v0")
    k(f"v_and_b32 v{V_L}, 63, v0")
    k(f"v_readfirstlane_b32 s{S_W}, v2")
    k(f"s_and_b32 s{S_HP}, s2, 15")
    k(f"s_lshr_b32 s{S_RB}, s2, 4")
    k(f"s_lshl_b32 s{S_WGB}, s{S_HP}, 4")
    k(f"s_add_u32 s{S_WGB}, s{S_WGB}, s{S_RB}")
    for name, sb in srds:
        k(f"s_mov_b32 s{sb + 2}, {SIZES[name]:#x}")
        k(f"s_mov_b32 s{sb + 3}, 0x00020000")
    k("s_waitcnt lgkmcnt(0)")


def dma(k, voff, srd_base, soff, m0, tag, sc=""):
    k(f"s_mov_b32 m0, {m0}") if m0 is not None else None
    k(f"buffer_load_dwordx4 v{voff}, {srd(srd_base)}, {soff} offen lds {sc}".rstrip(), tag=tag)


QKV_XB = 96 * 1024
QKV_NSX = 4


def qkv_phase(k, V, fused=False):
    vW0, vW1, vX0, vX1 = V["W0"], V["W1"], V["X0"], V["X1"]
    vXA, vWA, vVA = V["XA"], V["WA"], V["VA"]
    D1, D2 = V["D1"], V["D2"]
    xf, wf, vf = V["xf"], V["wf"], V["vf"]
    t0, t1, t2 = V["t0"], V["t1"], V["t2"]
    l = V_L
    k.mark("qkv setup")
    k(f"v_lshrrev_b32 v{t0}, 2, v{l}")
    k(f"v_mul_u32_u24 v{t0}, 3072, v{t0}")
    k(f"v_and_b32 v{t1}, 3, v{l}")
    k(f"v_lshl_add_u32 v{vW0}, v{t1}, 4, v{t0}")
    k(f"v_xor_b32 v{t1}, 2, v{t1}")
    k(f"v_lshl_add_u32 v{vW1}, v{t1}, 4, v{t0}")
    k(f"v_lshrrev_b32 v{t0}, 3, v{l}")
    k(f"v_lshlrev_b32 v{t0}, 10, v{t0}")
    k(f"v_lshrrev_b32 v{t1}, 4, v{l}")
    k(f"v_and_b32 v{t2}, 7, v{l}")
    k(f"v_xor_b32 v{t1}, v{t1}, v{t2}")
    k(f"v_lshl_add_u32 v{vX0}, v{t1}, 4, v{t0}")
    k(f"v_xor_b32 v{t1}, 4, v{t1}")
    k(f"v_lshl_add_u32 v{vX1}, v{t1}, 4, v{t0}")
    sWs, sWl, sXs, sXl = S_A, S_B, S_C, S_D
    k(f"s_mul_i32 s{sWs}, s{S_W}, {16 * 3072}")
    k(f"s_lshl_b32 s{S_T0}, s{S_HP}, 6")
    k(f"s_add_u32 s{sWs}, s{sWs}, s{S_T0}")
    k(f"s_lshl_b32 s{sWl}, s{S_W}, 10")
    k(f"s_lshl_b32 s{sXs}, s{S_RB}, 17")
    k(f"s_lshl_b32 s{S_T0}, s{S_W}, 14")
    k(f"s_add_u32 s{sXs}, s{sXs}, s{S_T0}")
    k(f"s_lshl_b32 s{sXl}, s{S_W}, 11")
    k(f"s_add_u32 s{sXl}, s{sXl}, {QKV_XB}")

    def w_group(G):
        for a in range(3):
            k(f"s_add_u32 m0, s{sWl}, {a * 32768 + G * 8192}")
            k(f"s_add_u32 s{S_T0}, s{sWs}, {G * 128 * 3072 + a * 1024}")
            k(f"buffer_load_dwordx4 v{vW1 if a == 1 else vW0}, {srd(SRD_W)}, s{S_T0} offen lds", tag=f"W{G}")

    def x_chunk(c):
        slot = c % QKV_NSX
        for par in range(2):
            k(f"s_add_u32 m0, s{sXl}, {slot * 16384 + par * 1024}")
            k(f"s_add_u32 s{S_T0}, s{sXs}, {par * 8192 + c * 128}")
            k(f"buffer_load_dwordx4 v{vX1 if par else vX0}, {srd(SRD_AX)}, s{S_T0} offen lds", tag=f"X{c}")

    k.mark("qkv first loads")
    x_chunk(0); w_group(0); x_chunk(1); w_group(1); x_chunk(2); x_chunk(3); w_group(2); w_group(3)

    k.mark("qkv frag addresses")
    k(f"v_and_b32 v{t0}, 31, v{l}")
    k(f"v_lshrrev_b32 v{t1}, 1, v{t0}")
    k(f"v_and_b32 v{t1}, 7, v{t1}")
    k(f"v_lshrrev_b32 v{t2}, 5, v{l}")
    k(f"v_xor_b32 v{t1}, v{t1}, v{t2}")
    k(f"s_and_b32 s{S_T0}, s{S_W}, 3")
    k(f"s_lshl_b32 s{S_T0}, s{S_T0}, 12")
    k(f"s_add_u32 s{S_T0}, s{S_T0}, {QKV_XB}")
    k(f"v_lshlrev_b32 v{t0}, 7, v{t0}")
    k(f"v_add_u32 v{t0}, s{S_T0}, v{t0}")
    for ks in range(4):
        k(f"v_xor_b32 v{t2}, {2 * ks}, v{t1}")
        k(f"v_lshl_add_u32 v{vXA + ks}, v{t2}, 4, v{t0}")
    k(f"v_and_b32 v{t0}, 15, v{l}")
    k(f"v_lshrrev_b32 v{t1}, 2, v{t0}")
    k(f"v_and_b32 v{t0}, 3, v{t0}")
    k(f"v_lshrrev_b32 v{t2}, 5, v{l}")
    k(f"v_lshl_add_u32 v{t1}, v{t2}, 3, v{t1}")
    k(f"v_lshlrev_b32 v{t1}, 6, v{t1}")
    k(f"v_lshl_add_u32 v{t1}, v{t0}, 3, v{t1}")
    k(f"v_bfe_u32 v{t2}, v{l}, 4, 1")
    k(f"v_lshl_add_u32 v{vVA}, v{t2}, 5, v{t1}")
    k(f"v_add_u32 v{vVA}, 65536, v{vVA}")
    k(f"s_lshr_b32 s{S_T0}, s{S_W}, 2")
    k(f"v_xor_b32 v{t0}, s{S_T0}, v{t2}")
    k(f"v_lshl_add_u32 v{t1}, v{t0}, 5, v{t1}")
    k(f"v_lshl_add_u32 v{vWA}, v{t2}, 15, v{t1}")

    lab_b = k.newlabel("qkv_hd1")
    lab_e = k.newlabel("qkv_join")
    k(f"s_cmp_ge_u32 s{S_W}, 4")
    k(f"s_cbranch_scc1 {lab_b}")

    def main(withv):
        k.mark("qkv main " + ("V" if withv else "noV"))
        for c in range(8):
            slot = c % QKV_NSX
            k.wait_vm(f"X{c}")
            k.wait_vm(f"W{c // 2}")
            k("s_barrier")
            if c >= 1 and c - 1 + QKV_NSX < 8:
                x_chunk(c - 1 + QKV_NSX)

            def reads(ks):
                k0 = c * 64 + ks * 16
                k(f"ds_read_b128 {vr(xf + 4 * ks, 4)}, v{vXA + ks} offset:{slot * 16384}")
                k(f"ds_read_b64_tr_b16 {vr(wf + 4 * ks, 2)}, v{vWA} offset:{k0 * 64}")
                k(f"ds_read_b64_tr_b16 {vr(wf + 4 * ks + 2, 2)}, v{vWA} offset:{k0 * 64 + 256}")
                if withv:
                    k(f"ds_read_b64_tr_b16 {vr(vf + 4 * ks, 2)}, v{vVA} offset:{k0 * 64}")
                    k(f"ds_read_b64_tr_b16 {vr(vf + 4 * ks + 2, 2)}, v{vVA} offset:{k0 * 64 + 256}")

            def mm(ks):
                first = (c == 0 and ks == 0)
                k(f"v_mfma_f32_32x32x16_bf16 {vr(D1, 16)}, {vr(wf + 4 * ks, 4)}, {vr(xf + 4 * ks, 4)}, {'0' if first else vr(D1, 16)}")
                if withv:
                    k(f"v_mfma_f32_32x32x16_bf16 {vr(D2, 16)}, {vr(xf + 4 * ks, 4)}, {vr(vf + 4 * ks, 4)}, {'0' if first else vr(D2, 16)}")
            reads(0); reads(1); reads(2)
            mm(0)
            reads(3)
            mm(1); mm(2); mm(3)

    snap = k.snapshot()
    main(True)
    qkv_epilogue(k, V, True, fused)
    k(f"s_branch {lab_e}")
    k.label(lab_b)
    k.restore(snap)
    main(False)
    qkv_epilogue(k, V, False, fused)
    k.label(lab_e)


def qkv_epilogue(k, V, withv, fused):
    D1, D2 = V["D1"], V["D2"]
    Qf, Kf, Vt = V["Qf"], V["Kf"], V["Vt"]
    t0, t1, t2 = V["t0"], V["t1"], V["t2"]
    l = V_L
    k.mark("qkv epilogue")
    k(f"s_mov_b32 s{S_T0}, {f2u(QSCALE):#x}")
    for i in range(8):
        k(f"v_mul_f32 v{D1 + i}, s{S_T0}, v{D1 + i}")
    for i in range(4):
        k(f"v_cvt_pk_bf16_f32 v{Kf + i}, v{D1 + 8 + 2 * i}, v{D1 + 9 + 2 * i}")
    for i in range(4):
        k(f"v_cvt_pk_bf16_f32 v{Qf + i}, v{D1 + 2 * i}, v{D1 + 1 + 2 * i}")
    k(f"s_lshl_b32 s{S_T1}, s{S_WGB}, 14")
    k(f"s_lshr_b32 s{S_T0}, s{S_W}, 2")
    k(f"s_lshl_b32 s{S_T0}, s{S_T0}, 13")
    k(f"s_add_u32 s{S_T2}, s{S_T1}, s{S_T0}")
    k(f"s_and_b32 s{S_T0}, s{S_W}, 3")
    k(f"s_lshl_b32 s{S_T0}, s{S_T0}, 11")
    k(f"s_add_u32 s{S_T2}, s{S_T2}, s{S_T0}")
    k(f"s_add_u32 s{S_T1}, s{S_T1}, s{S_T0}")
    k(f"v_lshlrev_b32 v{t0}, 4, v{l}")
    sc = "sc1" if fused else ""
    k(f"buffer_store_dwordx4 {vr(Kf, 4)}, v{t0}, {srd(SRD_WS)}, s{S_T2} offen {sc}".rstrip())
    if not fused:
        k(f"s_lshl_b32 s{S_T2}, s{S_WGB}, 13")
        k(f"s_lshl_b32 s{S_T0}, s{S_W}, 10")
        k(f"s_add_u32 s{S_T2}, s{S_T2}, s{S_T0}")
        k(f"s_add_u32 s{S_T2}, s{S_T2}, {WS_QF}")
        k(f"buffer_store_dwordx4 {vr(Qf, 4)}, v{t0}, {srd(SRD_WS)}, s{S_T2} offen")
    if withv:
        for i in range(8):
            k(f"v_cvt_pk_bf16_f32 v{Vt + i}, v{D2 + 2 * i}, v{D2 + 1 + 2 * i}")
        k(f"v_bfe_u32 v{t1}, v{l}, 4, 1")
        k(f"v_lshlrev_b32 v{t1}, 13, v{t1}")
        k(f"v_and_b32 v{t2}, 15, v{l}")
        k(f"v_lshl_add_u32 v{t1}, v{t2}, 4, v{t1}")
        k(f"v_lshrrev_b32 v{t2}, 5, v{l}")
        k(f"v_lshl_add_u32 v{t1}, v{t2}, 8, v{t1}")
        k(f"buffer_store_dwordx4 {vr(Vt, 4)}, v{t1}, {srd(SRD_WS)}, s{S_T1} offen offset:1024 {sc}".rstrip())
        k(f"buffer_store_dwordx4 {vr(Vt + 4, 4)}, v{t1}, {srd(SRD_WS)}, s{S_T1} offen offset:1536 {sc}".rstrip())


class Attn:
    def __init__(self, k, V, ring_base, NS, fused=False):
        self.k, self.V, self.base, self.NS, self.fused = k, V, ring_base, NS, fused

    def setup(self):
        k, V = self.k, self.V
        l = V_L
        t0, t1 = V["t0"], V["t1"]
        k.mark("attn setup")
        k(f"s_lshr_b32 s{S_T0}, s{S_W}, 2")
        k(f"s_lshl_b32 s{S_T0}, s{S_T0}, 13")
        k(f"s_add_u32 s{S_T0}, s{S_T0}, {self.base}")
        k(f"v_lshlrev_b32 v{t0}, 4, v{l}")
        k(f"v_add_u32 v{V['KA']}, s{S_T0}, v{t0}")
        k(f"v_and_b32 v{t0}, 15, v{l}")
        k(f"v_lshrrev_b32 v{t1}, 5, v{l}")
        k(f"v_lshlrev_b32 v{t1}, 8, v{t1}")
        k(f"v_lshl_add_u32 v{t0}, v{t0}, 4, v{t1}")
        k(f"s_add_u32 s{S_T0}, s{S_T0}, 1024")
        k(f"v_add_u32 v{V['VA']}, s{S_T0}, v{t0}")
        k(f"s_mov_b32 s{S_MASKV}, 0x0000ffff")
        k(f"s_mov_b32 s{S_MASKV + 1}, 0x0000ffff")
        for i in range(8):
            k(f"v_mov_b32 v{V['Vf'] + i}, 0x3f803f80")
        k(f"v_lshlrev_b32 v{V['DM']}, 4, v{l}")
        k(f"s_lshl_b32 s{S_E}, s{S_W}, 11")
        k(f"s_add_u32 s{S_E}, s{S_E}, {self.base}")
        k(f"s_lshl_b32 s{S_F}, s{S_HP}, 18")
        k(f"s_lshl_b32 s{S_T0}, s{S_W}, 11")
        k(f"s_add_u32 s{S_F}, s{S_F}, s{S_T0}")

    def dma_block(self, i):
        k, V = self.k, self.V
        slot = i % self.NS
        k(f"s_add_u32 s{S_T0}, s{S_RB}, {i}")
        k(f"s_and_b32 s{S_T0}, s{S_T0}, 15")
        k(f"s_lshl_b32 s{S_T0}, s{S_T0}, 14")
        k(f"s_add_u32 m0, s{S_E}, {slot * 16384}")
        k(f"s_add_u32 s{S_T0}, s{S_T0}, s{S_F}")
        sc = "sc1" if self.fused else ""
        k(f"buffer_load_dwordx4 v{V['DM']}, {srd(SRD_WS)}, s{S_T0} offen lds {sc}".rstrip(), tag=f"KV{i}")
        k(f"s_add_u32 m0, s{S_E}, {slot * 16384 + 1024}")
        k(f"s_add_u32 s{S_T0}, s{S_T0}, 1024")
        k(f"buffer_load_dwordx4 v{V['DM']}, {srd(SRD_WS)}, s{S_T0} offen lds {sc}".rstrip(), tag=f"KV{i}")

    def off(self, t):
        i, kt = divmod(t, 4)
        return (i % self.NS) * 16384 + kt * 2048

    def rdK(self, t):
        V = self.V
        self.k(f"ds_read_b128 {vr(V['Kf'], 4)}, v{V['KA']} offset:{self.off(t)}")

    def rdV(self, t):
        k, V = self.k, self.V
        k(f"s_mov_b64 exec, s[{S_MASKV}:{S_MASKV + 1}]")
        k(f"ds_read_b128 {vr(V['Vf'], 4)}, v{V['VA']} offset:{self.off(t)}")
        k(f"ds_read_b128 {vr(V['Vf'] + 4, 4)}, v{V['VA']} offset:{self.off(t) + 512}")
        k("s_mov_b64 exec, -1")

    def QK(self, t):
        V = self.V
        S = V["S"] + 16 * (t & 1)
        self.k(f"v_mfma_f32_32x32x16_bf16 {vr(S, 16)}, {vr(V['Kf'], 4)}, {vr(V['Qf'], 4)}, 0")

    def PV(self, t, j):
        V = self.V
        P = V["P"] + 8 * (t & 1) + 4 * j
        O = vr(V["O"], 16)
        c = "0" if (t == 0 and j == 0) else O
        self.k(f"v_mfma_f32_32x32x16_bf16 {O}, {vr(V['Vf'] + 4 * j, 4)}, {vr(P, 4)}, {c}")

    def tile(self, t, T=64, hook=None):
        k, V = self.k, self.V
        S = V["S"] + 16 * (t & 1)
        P = V["P"] + 8 * (t & 1)
        E = lambda i: k(f"v_exp_f32 v{S + i}, v{S + i}")
        C = lambda i: k(f"v_cvt_pk_bf16_f32 v{P + i}, v{S + 2 * i}, v{S + 2 * i + 1}")
        H = (lambda p: hook(p)) if hook else (lambda p: None)
        H(0)
        if t + 1 < T:
            self.QK(t + 1)
        if t + 2 < T:
            self.rdK(t + 2)
        H(1)
        for i in range(6): E(i)
        if t >= 1:
            self.PV(t - 1, 0)
        H(2)
        E(6); E(7)
        for i in range(4): C(i)
        E(8); E(9)
        if t >= 1:
            self.PV(t - 1, 1)
        self.rdV(t)
        H(3)
        for i in range(10, 16): E(i)
        H(4)
        for i in range(4, 8): C(i)
        H(5)

    def main(self, side=None, first_from_dma=True):
        k, V = self.k, self.V
        NS = self.NS
        k.mark("attn prologue")
        if first_from_dma:
            for i in range(NS - 1):
                self.dma_block(i)
            k.wait_vm("KV0")
            k("s_barrier")
        self.rdK(0)
        self.QK(0)
        self.rdK(1)
        for t in range(64):
            i, kt = divmod(t, 4)
            if kt == 0:
                k.mark(f"attn block {i}")

            def hook(pos, t=t, i=i, kt=kt):
                if pos == 0 and kt == 2 and i + 1 < 16:
                    k.wait_vm(f"KV{i + 1}")
                    k("s_barrier")
                    if i + NS - 1 < 16:
                        self.dma_block(i + NS - 1)
                if side:
                    side(t, pos)
            self.tile(t, 64, hook)
        self.PV(63, 0)
        self.PV(63, 1)

    def finish(self):
        k, V = self.k, self.V
        O = V["O"]
        t0 = V["t0"]
        k.mark("attn finish")
        k(f"v_rcp_f32 v{t0}, v{O + 8}")
        for i in range(8):
            k(f"v_mul_f32 v{O + i}, v{O + i}, v{t0}")
        for i in range(4):
            k(f"v_cvt_pk_bf16_f32 v{V['Of'] + i}, v{O + 2 * i}, v{O + 2 * i + 1}")

    def store_o(self):
        k, V = self.k, self.V
        t0 = V["t0"]
        k(f"s_and_b32 s{S_T0}, s{S_W}, 3")
        k(f"s_lshl_b32 s{S_T1}, s{S_RB}, 2")
        k(f"s_add_u32 s{S_T0}, s{S_T0}, s{S_T1}")
        k(f"s_lshl_b32 s{S_T0}, s{S_T0}, 15")
        k(f"s_lshr_b32 s{S_T1}, s{S_W}, 2")
        k(f"s_lshl_b32 s{S_T2}, s{S_HP}, 1")
        k(f"s_add_u32 s{S_T1}, s{S_T1}, s{S_T2}")
        k(f"s_lshl_b32 s{S_T1}, s{S_T1}, 10")
        k(f"s_add_u32 s{S_T0}, s{S_T0}, s{S_T1}")
        k(f"s_add_u32 s{S_T0}, s{S_T0}, {WS_OF}")
        k(f"v_lshlrev_b32 v{t0}, 4, v{V_L}")
        sc = "sc1" if self.fused else ""
        k(f"buffer_store_dwordx4 {vr(V['Of'], 4)}, v{t0}, {srd(SRD_WS)}, s{S_T0} offen {sc}".rstrip())


class SsmU:
    CH = 24576

    def __init__(self, k, V, base, NS):
        self.k, self.V, self.base, self.NS = k, V, base, NS

    def setup(self):
        k, V = self.k, self.V
        l = V_L
        t0, t1, t2 = V["t0"], V["t1"], V["t2"]
        k.mark("ssmU setup")
        k(f"v_lshrrev_b32 v{t0}, 3, v{l}")
        k(f"v_lshlrev_b32 v{t0}, 10, v{t0}")
        k(f"v_lshrrev_b32 v{t1}, 4, v{l}")
        k(f"v_and_b32 v{t2}, 7, v{l}")
        k(f"v_xor_b32 v{t1}, v{t1}, v{t2}")
        k(f"v_lshl_add_u32 v{V['X0']}, v{t1}, 4, v{t0}")
        k(f"v_xor_b32 v{t1}, 4, v{t1}")
        k(f"v_lshl_add_u32 v{V['X1']}, v{t1}, 4, v{t0}")
        k(f"s_lshr_b32 s{S_T0}, s{S_W}, 2")
        k(f"v_lshrrev_b32 v{t1}, 4, v{l}")
        k(f"v_lshlrev_b32 v{t1}, 1, v{t1}")
        k(f"v_or_b32 v{t1}, s{S_T0}, v{t1}")
        k(f"v_xor_b32 v{t1}, v{t1}, v{t2}")
        k(f"v_lshl_add_u32 v{V['BD']}, v{t1}, 4, v{t0}")
        k(f"s_lshl_b32 s{S_A}, s{S_RB}, 17")
        k(f"s_lshl_b32 s{S_T0}, s{S_W}, 14")
        k(f"s_add_u32 s{S_A}, s{S_A}, s{S_T0}")
        k(f"s_lshl_b32 s{S_B}, s{S_W}, 11")
        k(f"s_add_u32 s{S_B}, s{S_B}, {self.base}")
        k(f"s_lshl_b32 s{S_C}, s{S_HP}, 15")
        k(f"s_and_b32 s{S_T0}, s{S_W}, 3")
        k(f"s_lshl_b32 s{S_T0}, s{S_T0}, 13")
        k(f"s_add_u32 s{S_C}, s{S_C}, s{S_T0}")
        k(f"s_lshl_b32 s{S_D}, s{S_W}, 10")
        k(f"s_add_u32 s{S_D}, s{S_D}, {self.base + 16384}")
        k(f"v_bfe_u32 v{t0}, v{l}, 2, 1")
        k(f"v_lshlrev_b32 v{t0}, 4, v{t0}")
        k(f"v_and_b32 v{t1}, 3, v{l}")
        k(f"v_add_u32 v{t0}, v{t0}, v{t1}")
        k(f"v_bfe_u32 v{t1}, v{l}, 3, 2")
        k(f"v_lshl_add_u32 v{t0}, v{t1}, 2, v{t0}")
        k(f"v_lshrrev_b32 v{t1}, 1, v{t0}")
        k(f"v_and_b32 v{t1}, 7, v{t1}")
        k(f"v_lshrrev_b32 v{t2}, 5, v{l}")
        k(f"v_xor_b32 v{t1}, v{t1}, v{t2}")
        k(f"s_and_b32 s{S_T0}, s{S_W}, 3")
        k(f"s_lshl_b32 s{S_T0}, s{S_T0}, 12")
        k(f"s_add_u32 s{S_T0}, s{S_T0}, {self.base}")
        k(f"v_lshlrev_b32 v{t0}, 7, v{t0}")
        k(f"v_add_u32 v{t0}, s{S_T0}, v{t0}")
        for ks in range(4):
            k(f"v_xor_b32 v{t2}, {2 * ks}, v{t1}")
            k(f"v_lshl_add_u32 v{V['AA'] + ks}, v{t2}, 4, v{t0}")
        k(f"v_bfe_u32 v{t0}, v{l}, 1, 4")
        k(f"v_bfe_u32 v{t1}, v{l}, 2, 2")
        k(f"v_lshlrev_b32 v{t1}, 1, v{t1}")
        k(f"v_and_b32 v{t2}, 1, v{l}")
        k(f"v_or_b32 v{t1}, v{t1}, v{t2}")
        k(f"v_lshlrev_b32 v{t0}, 7, v{t0}")
        k(f"v_lshl_add_u32 v{t0}, v{t2}, 12, v{t0}")
        k(f"v_lshrrev_b32 v{t2}, 5, v{l}")
        k(f"v_xor_b32 v{t1}, v{t1}, v{t2}")
        k(f"s_lshr_b32 s{S_T0}, s{S_W}, 2")
        k(f"s_lshl_b32 s{S_T0}, s{S_T0}, 11")
        k(f"s_add_u32 s{S_T0}, s{S_T0}, {self.base + 16384}")
        k(f"v_add_u32 v{t0}, s{S_T0}, v{t0}")
        for ks in range(4):
            k(f"v_xor_b32 v{t2}, {2 * ks}, v{t1}")
            k(f"v_lshl_add_u32 v{V['BA'] + ks}, v{t2}, 4, v{t0}")

    def dma_chunk(self, c):
        k, V = self.k, self.V
        slot = (c % self.NS) * self.CH
        for par in range(2):
            k(f"s_add_u32 m0, s{S_B}, {slot + par * 1024}")
            k(f"s_add_u32 s{S_T0}, s{S_A}, {par * 8192 + c * 128}")
            k(f"buffer_load_dwordx4 v{V['X1'] if par else V['X0']}, {srd(SRD_BX)}, s{S_T0} offen lds", tag=f"U{c}")
        k(f"s_add_u32 m0, s{S_D}, {slot}")
        k(f"s_add_u32 s{S_T0}, s{S_C}, {c * 128}")
        k(f"buffer_load_dwordx4 v{V['BD']}, {srd(V['SRD_BSEL'])}, s{S_T0} offen lds", tag=f"U{c}")

    def select_b_srd(self):
        k, V = self.k, self.V
        b = V["SRD_BSEL"]
        k(f"s_cmp_ge_u32 s{S_W}, 4")
        k(f"s_cselect_b32 s{b}, s{SRD_BIM}, s{SRD_BRE}")
        k(f"s_cselect_b32 s{b + 1}, s{SRD_BIM + 1}, s{SRD_BRE + 1}")
        k(f"s_mov_b32 s{b + 2}, {SIZES['BRE']:#x}")
        k(f"s_mov_b32 s{b + 3}, 0x00020000")

    def reads(self, c, ks):
        k, V = self.k, self.V
        slot = (c % self.NS) * self.CH
        b = ks & 1
        k(f"ds_read_b128 {vr(V['af'] + 4 * b, 4)}, v{V['AA'] + ks} offset:{slot}")
        k(f"ds_read_b128 {vr(V['bf'] + 4 * b, 4)}, v{V['BA'] + ks} offset:{slot}")

    def mm(self, c, ks):
        k, V = self.k, self.V
        b = ks & 1
        U = vr(V["U"], 16)
        k(f"v_mfma_f32_32x32x16_bf16 {U}, {vr(V['af'] + 4 * b, 4)}, {vr(V['bf'] + 4 * b, 4)}, {'0' if (c == 0 and ks == 0) else U}")

    def gemm_standalone(self):
        k = self.k
        NS = self.NS
        for c in range(min(NS, 8)):
            self.dma_chunk(c)
        k.mark("ssmU gemm")
        for c in range(8):
            k.wait_vm(f"U{c}")
            k("s_barrier")
            if c >= 1 and c - 1 + NS < 8:
                self.dma_chunk(c - 1 + NS)
            self.reads(c, 0); self.reads(c, 1)
            self.mm(c, 0); self.reads(c, 2)
            self.mm(c, 1); self.reads(c, 3)
            self.mm(c, 2); self.mm(c, 3)

    def consts_load(self):
        k, V = self.k, self.V
        t0 = V["c0"]
        k(f"v_bfe_u32 v{t0}, v{V_L}, 1, 4")
        k(f"s_lshr_b32 s{S_T0}, s{S_W}, 2")
        k(f"s_lshl_b32 s{S_T0}, s{S_T0}, 4")
        k(f"s_lshl_b32 s{S_T1}, s{S_HP}, 5")
        k(f"s_add_u32 s{S_T0}, s{S_T0}, s{S_T1}")
        k(f"v_add_u32 v{t0}, s{S_T0}, v{t0}")
        k(f"v_lshlrev_b32 v{t0}, 1, v{t0}")
        k(f"global_load_ushort v{V['lre']}, v{t0}, s[{P_LRE}:{P_LRE + 1}]")
        k(f"global_load_ushort v{V['lim']}, v{t0}, s[{P_LIM}:{P_LIM + 1}]")
        k(f"global_load_ushort v{V['ldt']}, v{t0}, s[{P_LDT}:{P_LDT + 1}]")

    def consts_compute(self):
        k, V = self.k, self.V
        lre, lim, ldt = V["lre"], V["lim"], V["ldt"]
        ar, bs = V["ar"], V["bs"]
        c0, c1, c2, c3 = V["c0"], V["c1"], V["c2"], V["c3"]
        LOG2E = f2u(1.4426950408889634)
        k.mark("ssm consts")
        k(f"v_lshlrev_b32 v{lre}, 16, v{lre}")
        k(f"v_lshlrev_b32 v{lim}, 16, v{lim}")
        k(f"v_lshlrev_b32 v{ldt}, 16, v{ldt}")
        k(f"v_mul_f32 v{c0}, {LOG2E:#x}, v{ldt}")
        k(f"v_exp_f32 v{c0}, v{c0}")
        k(f"s_nop 0")
        k(f"v_cvt_pk_bf16_f32 v{c0}, v{c0}, v{c0}")
        k(f"v_and_b32 v{c0}, 0xffff0000, v{c0}")
        k(f"v_mul_f32 v{c1}, v{c0}, v{lre}")
        k(f"v_mul_f32 v{c2}, v{c0}, v{lim}")
        k(f"v_mul_f32 v{c1}, {LOG2E:#x}, v{c1}")
        k(f"v_exp_f32 v{c1}, v{c1}")
        k(f"v_mul_f32 v{c2}, 0.15915494309189535, v{c2}")
        k(f"v_fract_f32 v{c2}, v{c2}")
        k(f"v_cos_f32 v{c3}, v{c2}")
        k(f"v_sin_f32 v{c2}, v{c2}")
        k(f"v_mul_f32 v{ar}, v{c1}, v{c3}")
        k(f"v_mul_f32 v{c2}, v{c1}, v{c2}")
        k(f"v_add_f32 v{c0}, -1.0, v{ar}")
        k(f"v_mul_f32 v{c1}, v{lre}, v{lre}")
        k(f"v_fmac_f32 v{c1}, v{lim}, v{lim}")
        k(f"v_rcp_f32 v{c1}, v{c1}")
        k(f"v_mul_f32 v{c3}, v{c0}, v{lre}")
        k(f"v_fmac_f32 v{c3}, v{c2}, v{lim}")
        k(f"v_mul_f32 v{ldt}, v{c2}, v{lre}")
        k(f"v_fma_f32 v{ldt}, -v{c0}, v{lim}, v{ldt}")
        k(f"v_mul_f32 v{c3}, v{c3}, v{c1}")
        k(f"v_mul_f32 v{ldt}, v{ldt}, v{c1}")
        k(f"v_and_b32 v{c0}, 1, v{V_L}")
        k(f"v_cmp_eq_u32 vcc, 1, v{c0}")
        k(f"v_sub_f32 v{c1}, 0, v{c2}")
        k(f"v_cndmask_b32 v{bs}, v{c1}, v{c2}, vcc")
        k(f"v_add_f32 v{c3}, v{c3}, v{c3}")
        k(f"v_sub_f32 v{c1}, 0, v{c3}")
        k(f"v_cndmask_b32 v{V['G1']}, v{c3}, v{c1}, vcc")
        k(f"v_mul_f32 v{V['G2']}, -2.0, v{ldt}")
        k(f"v_mov_b32 v{c0}, v{ar}")
        for s in range(7):
            k(f"v_mul_f32 v{c1}, v{c0}, v{c2}")
            k(f"v_mul_f32 v{c3}, v{c2}, v{c2}")
            k(f"v_fma_f32 v{c0}, v{c0}, v{c0}, -v{c3}")
            k(f"v_add_f32 v{c2}, v{c1}, v{c1}")
            if s == 3:
                k(f"v_mov_b32 v{V['r16']}, v{c0}")
                k(f"v_sub_f32 v{c1}, 0, v{c2}")
                k(f"v_cndmask_b32 v{V['s16']}, v{c1}, v{c2}, vcc")
        k(f"v_mov_b32 v{V['r128']}, v{c0}")
        k(f"v_sub_f32 v{c1}, 0, v{c2}")
        k(f"v_cndmask_b32 v{V['s128']}, v{c1}, v{c2}, vcc")

    DPP = "quad_perm:[1,0,3,2] row_mask:0xf bank_mask:0xf"

    def cstep(self, dst, prev, add, r, s):
        k = self.k
        k(f"v_fma_f32 v{dst}, v{r}, v{prev}, v{add}")
        k(f"v_fmac_f32_dpp v{dst}, v{prev}, v{s} {self.DPP}")

    def pass1(self):
        k, V = self.k, self.V
        U, a, b = V["U"], V["e"], V["c0"]
        k.mark("ssm pass1")
        regs = [a, b]
        prev = U
        for j in range(1, 16):
            dst = regs[(15 - j) & 1]
            self.cstep(dst, prev, U + j, V["ar"], V["bs"])
            prev = dst
        assert prev == a

    def pass2(self, carry):
        k, V = self.k, self.V
        U = V["U"]
        k.mark("ssm pass2")
        prev = carry
        for j in range(16):
            self.cstep(U + j, prev, U + j, V["ar"], V["bs"])
            prev = U + j
        c0, c1 = V["c0"], V["c1"]
        for i in range(8):
            for q, c in ((0, c0), (1, c1)):
                k(f"v_mul_f32 v{c}, v{V['G1']}, v{U + 2 * i + q}")
                k(f"v_fmac_f32_dpp v{c}, v{U + 2 * i + q}, v{V['G2']} {self.DPP}")
            k(f"v_cvt_pk_bf16_f32 v{V['Hp'] + i}, v{c0}, v{c1}")

    def store_h(self, fused):
        k, V = self.k, self.V
        t0, t1 = V["c0"], V["c1"]
        l = V_L
        k(f"v_and_b32 v{t0}, 1, v{l}")
        k(f"v_lshlrev_b32 v{t0}, 10, v{t0}")
        k(f"v_bfe_u32 v{t1}, v{l}, 1, 4")
        k(f"v_lshl_add_u32 v{t0}, v{t1}, 6, v{t0}")
        k(f"v_lshrrev_b32 v{t1}, 5, v{l}")
        k(f"v_lshl_add_u32 v{t0}, v{t1}, 5, v{t0}")
        k(f"s_lshl_b32 s{S_T0}, s{S_RB}, 18")
        k(f"s_bfe_u32 s{S_T1}, s{S_W}, 0x10001")
        k(f"s_lshl_b32 s{S_T1}, s{S_T1}, 17")
        k(f"s_add_u32 s{S_T0}, s{S_T0}, s{S_T1}")
        k(f"s_lshl_b32 s{S_T1}, s{S_HP}, 13")
        k(f"s_add_u32 s{S_T0}, s{S_T0}, s{S_T1}")
        k(f"s_lshr_b32 s{S_T1}, s{S_W}, 2")
        k(f"s_lshl_b32 s{S_T1}, s{S_T1}, 12")
        k(f"s_add_u32 s{S_T0}, s{S_T0}, s{S_T1}")
        k(f"s_and_b32 s{S_T1}, s{S_W}, 1")
        k(f"s_lshl_b32 s{S_T1}, s{S_T1}, 11")
        k(f"s_add_u32 s{S_T0}, s{S_T0}, s{S_T1}")
        k(f"s_add_u32 s{S_T0}, s{S_T0}, {WS_H}")
        sc = "sc1" if fused else ""
        k(f"buffer_store_dwordx4 {vr(V['Hp'], 4)}, v{t0}, {srd(SRD_WS)}, s{S_T0} offen {sc}".rstrip())
        k(f"buffer_store_dwordx4 {vr(V['Hp'] + 4, 4)}, v{t0}, {srd(SRD_WS)}, s{S_T0} offen offset:16 {sc}".rstrip())

    def seg_exchange(self, lds_base):
        k, V = self.k, self.V
        t0, t1 = V["c0"], V["c1"]
        l = V_L
        k(f"s_and_b32 s{S_T0}, s{S_W}, 3")
        k(f"s_lshl_b32 s{S_T0}, s{S_T0}, 9")
        k(f"s_lshr_b32 s{S_T1}, s{S_W}, 2")
        k(f"s_lshl_b32 s{S_T1}, s{S_T1}, 7")
        k(f"s_add_u32 s{S_T0}, s{S_T0}, s{S_T1}")
        k(f"s_add_u32 s{S_T0}, s{S_T0}, {lds_base}")
        k(f"v_lshrrev_b32 v{t0}, 5, v{l}")
        k(f"v_lshlrev_b32 v{t0}, 8, v{t0}")
        k(f"v_and_b32 v{t1}, 31, v{l}")
        k(f"v_lshl_add_u32 v{t0}, v{t1}, 2, v{t0}")
        k(f"v_add_u32 v{t0}, s{S_T0}, v{t0}")
        k(f"ds_write_b32 v{t0}, v{V['e']}")

    def seg_read(self, lds_base):
        k, V = self.k, self.V
        t0 = V["c0"]
        k(f"s_lshr_b32 s{S_T1}, s{S_W}, 2")
        k(f"s_lshl_b32 s{S_T1}, s{S_T1}, 7")
        k(f"s_add_u32 s{S_T1}, s{S_T1}, {lds_base}")
        k(f"v_and_b32 v{t0}, 31, v{V_L}")
        k(f"v_lshlrev_b32 v{t0}, 2, v{t0}")
        k(f"v_add_u32 v{t0}, s{S_T1}, v{t0}")
        for s in range(8):
            k(f"ds_read_b32 v{V['sg'] + s}, v{t0} offset:{s * 256}")

    def chunk_total(self):
        k, V = self.k, self.V
        sg, a, b = V["sg"], V["e"], V["c0"]
        regs = [a, b]
        prev = sg
        for s in range(1, 8):
            dst = regs[(7 - s) & 1]
            self.cstep(dst, prev, sg + s, V["r16"], V["s16"])
            prev = dst
        assert prev == a

    def e_addr(self, dst, t1):
        k = self.k
        k(f"s_lshr_b32 s{S_T1}, s{S_W}, 2")
        k(f"s_lshl_b32 s{S_T1}, s{S_T1}, 8")
        k(f"v_and_b32 v{t1}, 31, v{V_L}")
        k(f"v_lshlrev_b32 v{t1}, 3, v{t1}")
        k(f"v_add_u32 v{dst}, s{S_T1}, v{t1}")

    def local_carry(self, cin):
        k, V = self.k, self.V
        sg, cy, c0, c1 = V["sg"], V["cy"], V["c0"], V["c1"]
        k(f"s_and_b32 s{S_T0}, s{S_W}, 3")
        k(f"s_lshl_b32 s{S_T0}, s{S_T0}, 1")
        k(f"v_lshrrev_b32 v{c1}, 5, v{V_L}")
        k(f"v_add_u32 v{c1}, s{S_T0}, v{c1}")
        k(f"v_mov_b32 v{cy}, v{cin}")
        prev = cin
        tmp = [V["w0"], V["w1"]]
        for s in range(7):
            dst = tmp[s & 1]
            self.cstep(dst, prev, sg + s, V["r16"], V["s16"])
            k(f"v_cmp_lt_u32 vcc, {s}, v{c1}")
            k(f"v_cndmask_b32 v{cy}, v{cy}, v{dst}, vcc")
            prev = dst

    def e_store(self, tagreg, fused):
        k, V = self.k, self.V
        a, t1 = V["w0"], V["w1"]
        lab = k.newlabel("estore")
        k(f"s_and_b32 s{S_T0}, s{S_W}, 3")
        k(f"s_cmp_lg_u32 s{S_T0}, 0")
        k(f"s_cbranch_scc1 {lab}")
        self.e_addr(a, t1)
        k(f"v_mov_b32 v{V['ep']}, v{V['e']}")
        k(f"v_mov_b32 v{V['ep'] + 1}, {tagreg}")
        k(f"s_lshl_b32 s{S_T0}, s{S_WGB}, 9")
        k(f"s_add_u32 s{S_T0}, s{S_T0}, {WS_E}")
        k(f"s_mov_b64 exec, 0xffffffff")
        sc = "sc1" if fused else ""
        k(f"buffer_store_dwordx2 {vr(V['ep'], 2)}, v{a}, {srd(SRD_WS)}, s{S_T0} offen {sc}".rstrip(), tag="E")
        k(f"s_mov_b64 exec, -1")
        k.label(lab)

    def e_load(self, fused):
        k, V = self.k, self.V
        a, t1 = V["w0"], V["w1"]
        self.e_addr(a, t1)
        k(f"s_lshl_b32 s{S_T0}, s{S_HP}, 13")
        k(f"s_add_u32 s{S_T0}, s{S_T0}, {WS_E}")
        sc = "sc1" if fused else ""
        for c in range(15):
            k(f"buffer_load_dwordx2 {vr(V['Eg'] + 2 * c, 2)}, v{a}, {srd(SRD_WS)}, s{S_T0} offen offset:{(c * 512) % 4096} {sc}".rstrip())
            if c == 7:
                k(f"s_add_u32 s{S_T0}, s{S_T0}, 4096")

    def chunk_carry(self):
        k, V = self.k, self.V
        acc, tmp = V["cin"], V["w0"]
        done = k.newlabel("carry_done")
        k("s_waitcnt vmcnt(0)")
        k(f"v_mov_b32 v{acc}, 0")
        for c in range(15):
            k(f"s_cmp_le_u32 s{S_RB}, {c}")
            k(f"s_cbranch_scc1 {done}")
            self.cstep(tmp, acc, V["Eg"] + 2 * c, V["r128"], V["s128"])
            k(f"v_mov_b32 v{acc}, v{tmp}")
        k.label(done)
        k("s_nop 1")


class YGemm:
    CH = 32768

    def __init__(self, k, V, base, NS, fused=False):
        self.k, self.V, self.base, self.NS, self.fused = k, V, base, NS, fused

    def setup(self):
        k, V = self.k, self.V
        l = V_L
        t0, t1, t2 = V["t0"], V["t1"], V["t2"]
        k.mark("y setup")
        k(f"v_lshlrev_b32 v{V['HD']}, 4, v{l}")
        k(f"v_lshrrev_b32 v{t0}, 3, v{l}")
        k(f"v_lshlrev_b32 v{t0}, 10, v{t0}")
        k(f"v_lshrrev_b32 v{t1}, 4, v{l}")
        k(f"v_and_b32 v{t2}, 7, v{l}")
        k(f"v_xor_b32 v{t1}, v{t1}, v{t2}")
        k(f"v_lshl_add_u32 v{V['C0']}, v{t1}, 4, v{t0}")
        k(f"v_xor_b32 v{t1}, 4, v{t1}")
        k(f"v_lshl_add_u32 v{V['C1']}, v{t1}, 4, v{t0}")
        k(f"s_lshl_b32 s{S_A}, s{S_RB}, 18")
        k(f"s_and_b32 s{S_T0}, s{S_HP}, 1")
        k(f"s_lshl_b32 s{S_T0}, s{S_T0}, 17")
        k(f"s_add_u32 s{S_A}, s{S_A}, s{S_T0}")
        k(f"s_lshl_b32 s{S_T0}, s{S_W}, 11")
        k(f"s_add_u32 s{S_A}, s{S_A}, s{S_T0}")
        k(f"s_add_u32 s{S_A}, s{S_A}, {WS_H}")
        k(f"s_add_u32 s{S_B}, s{S_T0}, {self.base}")
        k(f"s_lshr_b32 s{S_C}, s{S_HP}, 1")
        k(f"s_lshl_b32 s{S_C}, s{S_C}, 16")
        k(f"s_and_b32 s{S_T0}, s{S_W}, 3")
        k(f"s_lshl_b32 s{S_T0}, s{S_T0}, 14")
        k(f"s_add_u32 s{S_C}, s{S_C}, s{S_T0}")
        k(f"s_lshl_b32 s{S_D}, s{S_W}, 11")
        k(f"s_add_u32 s{S_D}, s{S_D}, {self.base + 16384}")
        b = V["SRD_CSEL"]
        k(f"s_cmp_ge_u32 s{S_W}, 4")
        k(f"s_cselect_b32 s{b}, s{SRD_CIM}, s{SRD_CRE}")
        k(f"s_cselect_b32 s{b + 1}, s{SRD_CIM + 1}, s{SRD_CRE + 1}")
        k(f"s_mov_b32 s{b + 2}, {SIZES['CRE']:#x}")
        k(f"s_mov_b32 s{b + 3}, 0x00020000")
        k(f"v_and_b32 v{t0}, 15, v{l}")
        k(f"v_lshrrev_b32 v{t1}, 2, v{t0}")
        k(f"v_and_b32 v{t0}, 3, v{t0}")
        k(f"v_lshlrev_b32 v{t1}, 6, v{t1}")
        k(f"v_lshl_add_u32 v{t1}, v{t0}, 3, v{t1}")
        k(f"v_bfe_u32 v{t0}, v{l}, 4, 1")
        k(f"v_lshl_add_u32 v{t1}, v{t0}, 5, v{t1}")
        k(f"v_lshrrev_b32 v{t0}, 5, v{l}")
        k(f"v_lshl_add_u32 v{t1}, v{t0}, 10, v{t1}")
        k(f"s_lshr_b32 s{S_T0}, s{S_W}, 2")
        k(f"s_lshl_b32 s{S_T0}, s{S_T0}, 13")
        k(f"s_and_b32 s{S_T1}, s{S_W}, 1")
        k(f"s_lshl_b32 s{S_T1}, s{S_T1}, 11")
        k(f"s_add_u32 s{S_T0}, s{S_T0}, s{S_T1}")
        k(f"s_add_u32 s{S_T0}, s{S_T0}, {self.base}")
        k(f"v_add_u32 v{V['AA']}, s{S_T0}, v{t1}")
        k(f"v_and_b32 v{t0}, 31, v{l}")
        k(f"v_lshrrev_b32 v{t1}, 1, v{t0}")
        k(f"v_and_b32 v{t1}, 7, v{t1}")
        k(f"s_lshr_b32 s{S_T0}, s{S_W}, 2")
        k(f"s_lshl_b32 s{S_T0}, s{S_T0}, 2")
        k(f"v_xor_b32 v{t1}, s{S_T0}, v{t1}")
        k(f"v_lshlrev_b32 v{t0}, 7, v{t0}")
        k(f"v_lshrrev_b32 v{t2}, 5, v{l}")
        k(f"v_lshl_add_u32 v{t0}, v{t2}, 13, v{t0}")
        k(f"s_bfe_u32 s{S_T0}, s{S_W}, 0x10001")
        k(f"s_lshl_b32 s{S_T0}, s{S_T0}, 12")
        k(f"s_add_u32 s{S_T0}, s{S_T0}, {self.base + 16384}")
        k(f"v_add_u32 v{t0}, s{S_T0}, v{t0}")
        for q in range(4):
            k(f"v_xor_b32 v{t2}, {q}, v{t1}")
            k(f"v_lshl_add_u32 v{V['BA'] + q}, v{t2}, 4, v{t0}")

    def dma_chunk(self, c):
        k, V = self.k, self.V
        slot = (c % self.NS) * self.CH
        sc = "sc1" if self.fused else ""
        for par in range(2):
            k(f"s_add_u32 m0, s{S_B}, {slot + par * 1024}")
            k(f"s_add_u32 s{S_T0}, s{S_A}, {c * 16384 + par * 1024}")
            k(f"buffer_load_dwordx4 v{V['HD']}, {srd(SRD_WS)}, s{S_T0} offen lds {sc}".rstrip(), tag=f"Y{c}")
        for par in range(2):
            k(f"s_add_u32 m0, s{S_D}, {slot + par * 1024}")
            k(f"s_add_u32 s{S_T0}, s{S_C}, {c * 128 + par * 8192}")
            k(f"buffer_load_dwordx4 v{V['C1'] if par else V['C0']}, {srd(V['SRD_CSEL'])}, s{S_T0} offen lds", tag=f"Y{c}")

    def reads(self, c, q):
        k, V = self.k, self.V
        slot = (c % self.NS) * self.CH
        b = q & 1
        pg, ks = q >> 1, q & 1
        o = slot + pg * 4096 + ks * 512
        k(f"ds_read_b64_tr_b16 {vr(V['af'] + 4 * b, 2)}, v{V['AA']} offset:{o}")
        k(f"ds_read_b64_tr_b16 {vr(V['af'] + 4 * b + 2, 2)}, v{V['AA']} offset:{o + 256}")
        k(f"ds_read_b128 {vr(V['bf'] + 4 * b, 4)}, v{V['BA'] + q} offset:{slot}")

    def mm(self, c, q):
        k, V = self.k, self.V
        b = q & 1
        Y = vr(V["Y"], 16)
        k(f"v_mfma_f32_32x32x16_bf16 {Y}, {vr(V['af'] + 4 * b, 4)}, {vr(V['bf'] + 4 * b, 4)}, {'0' if (c == 0 and q == 0 and not V.get('y_acc')) else Y}")

    def gemm_standalone(self):
        k = self.k
        NS = self.NS
        for c in range(min(NS, 8)):
            self.dma_chunk(c)
        k.mark("y gemm")
        for c in range(8):
            k.wait_vm(f"Y{c}")
            k("s_barrier")
            if c >= 1 and c - 1 + NS < 8:
                self.dma_chunk(c - 1 + NS)
            self.reads(c, 0); self.reads(c, 1)
            self.mm(c, 0); self.reads(c, 2)
            self.mm(c, 1); self.reads(c, 3)
            self.mm(c, 2); self.mm(c, 3)

    def skip_loads(self):
        k, V = self.k, self.V
        t0, t1 = V["t0"], V["t1"]
        l = V_L
        k(f"v_and_b32 v{t0}, 31, v{l}")
        k(f"v_lshlrev_b32 v{t0}, 10, v{t0}")
        k(f"v_lshrrev_b32 v{t1}, 5, v{l}")
        k(f"v_lshl_add_u32 v{t0}, v{t1}, 4, v{t0}")
        k(f"s_lshl_b32 s{S_T0}, s{S_RB}, 17")
        k(f"s_and_b32 s{S_T1}, s{S_HP}, 1")
        k(f"s_lshl_b32 s{S_T1}, s{S_T1}, 16")
        k(f"s_add_u32 s{S_T0}, s{S_T0}, s{S_T1}")
        k(f"s_and_b32 s{S_T1}, s{S_W}, 1")
        k(f"s_lshl_b32 s{S_T1}, s{S_T1}, 15")
        k(f"s_add_u32 s{S_T0}, s{S_T0}, s{S_T1}")
        k(f"s_lshr_b32 s{S_T1}, s{S_HP}, 1")
        k(f"s_lshl_b32 s{S_T1}, s{S_T1}, 7")
        k(f"s_add_u32 s{S_T0}, s{S_T0}, s{S_T1}")
        k(f"s_bfe_u32 s{S_T1}, s{S_W}, 0x10001")
        k(f"s_lshl_b32 s{S_T1}, s{S_T1}, 6")
        k(f"s_add_u32 s{S_T0}, s{S_T0}, s{S_T1}")
        k(f"s_lshr_b32 s{S_T1}, s{S_W}, 2")
        k(f"s_lshl_b32 s{S_T1}, s{S_T1}, 5")
        k(f"s_add_u32 s{S_T0}, s{S_T0}, s{S_T1}")
        k(f"buffer_load_dwordx4 {vr(V['xs'], 4)}, v{t0}, {srd(SRD_BX)}, s{S_T0} offen")
        k(f"s_lshr_b32 s{S_T0}, s{S_HP}, 1")
        k(f"s_lshl_b32 s{S_T0}, s{S_T0}, 6")
        k(f"s_bfe_u32 s{S_T1}, s{S_W}, 0x10001")
        k(f"s_lshl_b32 s{S_T1}, s{S_T1}, 5")
        k(f"s_add_u32 s{S_T0}, s{S_T0}, s{S_T1}")
        k(f"v_and_b32 v{t0}, 31, v{l}")
        k(f"v_add_u32 v{t0}, s{S_T0}, v{t0}")
        k(f"v_lshlrev_b32 v{t0}, 1, v{t0}")
        k(f"global_load_ushort v{V['dsk']}, v{t0}, s[{P_DSK}:{P_DSK + 1}]")

    def skip_mm(self):
        k, V = self.k, self.V
        t0, t1, db = V["t0"], V["t1"], V["db"]
        l = V_L
        k(f"v_and_b32 v{t0}, 31, v{l}")
        k(f"v_lshrrev_b32 v{t1}, 5, v{l}")
        k(f"v_lshlrev_b32 v{t1}, 3, v{t1}")
        k(f"v_sub_u32 v{t0}, v{t0}, v{t1}")
        k(f"s_lshr_b32 s{S_T0}, s{S_W}, 2")
        k(f"s_lshl_b32 s{S_T0}, s{S_T0}, 4")
        k(f"v_subrev_u32 v{t0}, s{S_T0}, v{t0}")
        k(f"v_lshlrev_b32 v{t1}, 16, v{V['dsk']}")
        for i in range(4):
            k(f"v_cmp_eq_u32 vcc, {2 * i}, v{t0}")
            k(f"v_cndmask_b32 v{db + i}, 0, v{V['dsk']}, vcc")
            k(f"v_cmp_eq_u32 vcc, {2 * i + 1}, v{t0}")
            k(f"v_cndmask_b32 v{db + i}, v{db + i}, v{t1}, vcc")
        Y = vr(V["Y"], 16)
        k(f"v_mfma_f32_32x32x16_bf16 {Y}, {vr(V['xs'], 4)}, {vr(db, 4)}, {Y}")


def reduce_and_store(k, V, ACC, lds_base, colbase):
    t0, t1, R = V["t0"], V["t1"], V["red"]
    l = V_L
    labA, labB = k.newlabel("redA"), k.newlabel("redB")
    k(f"s_and_b32 s{S_T0}, s{S_W}, 3")
    k(f"s_lshl_b32 s{S_T0}, s{S_T0}, 12")
    k(f"s_add_u32 s{S_T0}, s{S_T0}, {lds_base}")
    k(f"v_lshlrev_b32 v{t0}, 4, v{l}")
    k(f"v_add_u32 v{t0}, s{S_T0}, v{t0}")
    k(f"s_cmp_ge_u32 s{S_W}, 4")
    k(f"s_cbranch_scc1 {labA}")
    k(f"ds_write_b128 v{t0}, {vr(ACC + 8, 4)} offset:2048")
    k(f"ds_write_b128 v{t0}, {vr(ACC + 12, 4)} offset:3072")
    k("s_waitcnt lgkmcnt(0)")
    k("s_barrier")
    k(f"ds_read_b128 {vr(R, 4)}, v{t0}")
    k(f"ds_read_b128 {vr(R + 4, 4)}, v{t0} offset:1024")
    k("s_waitcnt lgkmcnt(0)")
    for i in range(8):
        k(f"v_add_f32 v{R + i}, v{R + i}, v{ACC + i}")
    k(f"s_branch {labB}")
    k.label(labA)
    k(f"ds_write_b128 v{t0}, {vr(ACC, 4)}")
    k(f"ds_write_b128 v{t0}, {vr(ACC + 4, 4)} offset:1024")
    k("s_waitcnt lgkmcnt(0)")
    k("s_barrier")
    k(f"ds_read_b128 {vr(R, 4)}, v{t0} offset:2048")
    k(f"ds_read_b128 {vr(R + 4, 4)}, v{t0} offset:3072")
    k("s_waitcnt lgkmcnt(0)")
    for i in range(8):
        k(f"v_add_f32 v{R + i}, v{R + i}, v{ACC + 8 + i}")
    k.label(labB)
    k(f"v_lshrrev_b32 v{t0}, 5, v{l}")
    k(f"v_lshlrev_b32 v{t0}, 14, v{t0}")
    k(f"v_and_b32 v{t1}, 31, v{l}")
    k(f"v_lshl_add_u32 v{t0}, v{t1}, 2, v{t0}")
    k(f"s_lshl_b32 s{S_T0}, s{S_RB}, 19")
    k(f"s_and_b32 s{S_T1}, s{S_HP}, 1")
    k(f"s_lshl_b32 s{S_T1}, s{S_T1}, 18")
    k(f"s_add_u32 s{S_T0}, s{S_T0}, s{S_T1}")
    k(f"s_and_b32 s{S_T1}, s{S_W}, 1")
    k(f"s_lshl_b32 s{S_T1}, s{S_T1}, 17")
    k(f"s_add_u32 s{S_T0}, s{S_T0}, s{S_T1}")
    k(f"s_lshr_b32 s{S_T1}, s{S_W}, 2")
    k(f"s_lshl_b32 s{S_T1}, s{S_T1}, 16")
    k(f"s_add_u32 s{S_T0}, s{S_T0}, s{S_T1}")
    k(f"s_lshr_b32 s{S_T1}, s{S_HP}, 1")
    k(f"s_lshl_b32 s{S_T1}, s{S_T1}, 8")
    k(f"s_add_u32 s{S_T0}, s{S_T0}, s{S_T1}")
    k(f"s_bfe_u32 s{S_T1}, s{S_W}, 0x10001")
    k(f"s_lshl_b32 s{S_T1}, s{S_T1}, 7")
    k(f"s_add_u32 s{S_T0}, s{S_T0}, s{S_T1}")
    k(f"s_add_u32 s{S_T0}, s{S_T0}, {colbase * 4}")
    for i in range(8):
        rowoff = ((i & 3) + 8 * (i >> 2)) * 4096
        if i == 1 or True:
            pass
        k(f"s_add_u32 s{S_T1}, s{S_T0}, {rowoff}")
        k(f"buffer_store_dword v{R + i}, v{t0}, {srd(SRD_OUT)}, s{S_T1} offen")


class OutProj:
    def __init__(self, k, V, base, fused=False):
        self.k, self.V, self.base, self.fused = k, V, base, fused

    def setup_and_dma(self):
        k, V = self.k, self.V
        l = V_L
        t0, t1 = V["t0"], V["t1"]
        k.mark("outproj dma")
        k(f"v_lshrrev_b32 v{t0}, 2, v{l}")
        k(f"v_lshlrev_b32 v{t0}, 10, v{t0}")
        k(f"v_and_b32 v{t1}, 3, v{l}")
        k(f"v_lshl_add_u32 v{V['WD']}, v{t1}, 4, v{t0}")
        k(f"s_lshr_b32 s{S_T1}, s{S_HP}, 1")
        k(f"s_lshl_b32 s{S_T1}, s{S_T1}, 7")
        k(f"s_lshr_b32 s{S_T0}, s{S_W}, 2")
        k(f"s_lshl_b32 s{S_T0}, s{S_T0}, 6")
        k(f"s_add_u32 s{S_T1}, s{S_T1}, s{S_T0}")
        k(f"s_and_b32 s{S_T0}, s{S_W}, 3")
        k(f"s_lshl_b32 s{S_T0}, s{S_T0}, 17")
        k(f"s_add_u32 s{S_T1}, s{S_T1}, s{S_T0}")
        k(f"s_lshl_b32 s{S_T2}, s{S_W}, 13")
        k(f"s_add_u32 s{S_T2}, s{S_T2}, {self.base}")
        for i in range(8):
            k(f"s_add_u32 m0, s{S_T2}, {i * 1024}")
            k(f"s_add_u32 s{S_T0}, s{S_T1}, {i * 16384}")
            k(f"buffer_load_dwordx4 v{V['WD']}, {srd(SRD_WO)}, s{S_T0} offen lds", tag="WO")

    def frag_addr(self):
        k, V = self.k, self.V
        l = V_L
        t0, t1 = V["t0"], V["t1"]
        k(f"v_and_b32 v{t0}, 15, v{l}")
        k(f"v_lshrrev_b32 v{t1}, 2, v{t0}")
        k(f"v_and_b32 v{t0}, 3, v{t0}")
        k(f"v_lshlrev_b32 v{t1}, 6, v{t1}")
        k(f"v_lshl_add_u32 v{t1}, v{t0}, 3, v{t1}")
        k(f"v_bfe_u32 v{t0}, v{l}, 4, 1")
        k(f"v_lshl_add_u32 v{t1}, v{t0}, 5, v{t1}")
        k(f"v_lshrrev_b32 v{t0}, 5, v{l}")
        k(f"v_lshl_add_u32 v{t1}, v{t0}, 8, v{t1}")
        k(f"s_bfe_u32 s{S_T0}, s{S_W}, 0x10001")
        k(f"s_lshl_b32 s{S_T0}, s{S_T0}, 15")
        k(f"s_lshr_b32 s{S_T1}, s{S_W}, 2")
        k(f"s_lshl_b32 s{S_T1}, s{S_T1}, 14")
        k(f"s_add_u32 s{S_T0}, s{S_T0}, s{S_T1}")
        k(f"s_add_u32 s{S_T0}, s{S_T0}, {self.base}")
        k(f"v_add_u32 v{V['WA']}, s{S_T0}, v{t1}")

    def o_loads(self):
        k, V = self.k, self.V
        t0 = V["t0"]
        k(f"s_lshl_b32 s{S_T0}, s{S_RB}, 2")
        k(f"s_and_b32 s{S_T1}, s{S_HP}, 1")
        k(f"s_lshl_b32 s{S_T1}, s{S_T1}, 1")
        k(f"s_add_u32 s{S_T0}, s{S_T0}, s{S_T1}")
        k(f"s_and_b32 s{S_T1}, s{S_W}, 1")
        k(f"s_add_u32 s{S_T0}, s{S_T0}, s{S_T1}")
        k(f"s_lshl_b32 s{S_T0}, s{S_T0}, 15")
        k(f"s_lshr_b32 s{S_T1}, s{S_W}, 2")
        k(f"s_lshl_b32 s{S_T1}, s{S_T1}, 14")
        k(f"s_add_u32 s{S_T0}, s{S_T0}, s{S_T1}")
        k(f"s_add_u32 s{S_T0}, s{S_T0}, {WS_OF}")
        k(f"v_lshlrev_b32 v{t0}, 4, v{V_L}")
        sc = "sc1" if self.fused else ""
        for s in range(16):
            k(f"buffer_load_dwordx4 {vr(V['Og'] + 4 * s, 4)}, v{t0}, {srd(SRD_WS)}, s{S_T0} offen offset:{(s % 4) * 1024} {sc}".rstrip())
            if s % 4 == 3 and s < 15:
                k(f"s_add_u32 s{S_T0}, s{S_T0}, 4096")

    def mm(self):
        k, V = self.k, self.V
        A = vr(V["ACC"], 16)
        wf = V["wf"]

        def rd(s):
            b = wf + 4 * (s % 3)
            k(f"ds_read_b64_tr_b16 {vr(b, 2)}, v{V['WA']} offset:{s * 1024}")
            k(f"ds_read_b64_tr_b16 {vr(b + 2, 2)}, v{V['WA']} offset:{s * 1024 + 512}")
        rd(0); rd(1)
        for s in range(16):
            if s + 2 < 16:
                rd(s + 2)
            b = wf + 4 * (s % 3)
            k(f"v_mfma_f32_32x32x16_bf16 {A}, {vr(V['Og'] + 4 * s, 4)}, {vr(b, 4)}, {'0' if s == 0 else A}")
```

```python
import sys
from asmlib import K
from common import *
from phases import *

HEADER = open("concat_heads__softmax_full_mha__ssm_conv_s5__prompt.s.ref").read().split("; Override launch")[0]


def new_kernel(name):
    k = K()
    k.exit_label = f"Lexit_{name}"
    k.uid = {"qkv_kernel": 1000, "attn_kernel": 2000, "ssm1_kernel": 3000, "ssm2_kernel": 4000, "out_kernel": 5000}.get(name, 9000)
    return k


def fin(k, name, vgpr):
    k.label(k.exit_label)
    k("s_endpgm")
    body = k.finalize()
    print(name, "nops:", k.stats, file=sys.stderr)
    return kernel_header(name) + f"{name}:\n" + body + "\n" + kernel_desc(name, vgpr)


def qkv_kernel():
    name = "qkv_kernel"
    k = new_kernel(name)
    prologue(k, [("AX", SRD_AX), ("WQKV", SRD_W), ("WS", SRD_WS)])
    V = dict(t0=2, t1=3, t2=4, W0=5, W1=6, X0=7, X1=8, XA=9, WA=13, VA=14, D1=16, D2=32, xf=48, wf=64, vf=80,
             Qf=96, Kf=100, Vt=104)
    qkv_phase(k, V, fused=False)
    return fin(k, name, 112)


def attn_kernel():
    name = "attn_kernel"
    k = new_kernel(name)
    prologue(k, [("WS", SRD_WS)])
    V = dict(t0=2, t1=3, KA=4, VA=5, DM=6, Qf=8, Kf=12, Vf=16, S=24, P=56, O=72, Of=88)
    A = Attn(k, V, 0, 4)
    A.setup()
    k(f"s_lshl_b32 s{S_T2}, s{S_WGB}, 13")
    k(f"s_lshl_b32 s{S_T0}, s{S_W}, 10")
    k(f"s_add_u32 s{S_T2}, s{S_T2}, s{S_T0}")
    k(f"s_add_u32 s{S_T2}, s{S_T2}, {WS_QF}")
    k(f"buffer_load_dwordx4 {vr(V['Qf'], 4)}, v{V['DM']}, {srd(SRD_WS)}, s{S_T2} offen")
    A.main()
    A.finish()
    A.store_o()
    return fin(k, name, 96)


SSM_V = dict(t0=2, t1=3, t2=4, X0=5, X1=6, BD=7, AA=8, BA=12, af=16, bf=24, U=32, lre=48, lim=49, ldt=50, ar=51, bs=52,
             c0=53, c1=54, c2=55, c3=56, G1=57, G2=58, r16=59, s16=60, r128=61, s128=62, e=63, sg=64, cy=72, cin=73,
             w0=74, w1=75, ep=76, Hp=80, Eg=88, SRD_BSEL=72)


def ssm_kernel(stage):
    name = f"ssm{stage}_kernel"
    k = new_kernel(name)
    prologue(k, [("WS", SRD_WS), ("BX", SRD_BX), ("BRE", SRD_BRE), ("BIM", SRD_BIM)], [("LRE", P_LRE), ("LIM", P_LIM), ("LDT", P_LDT)])
    V = SSM_V
    U = SsmU(k, V, 0, 3)
    U.setup()
    U.select_b_srd()
    U.consts_load()
    U.consts_compute()
    U.gemm_standalone()
    U.pass1()
    EX = 3 * SsmU.CH
    U.seg_exchange(EX)
    k("s_waitcnt lgkmcnt(0)")
    k("s_barrier")
    U.seg_read(EX)
    if stage == 1:
        U.chunk_total()
        U.e_store("0", False)
    else:
        U.e_load(False)
        U.chunk_carry()
        U.local_carry(V["cin"])
        U.pass2(V["cy"])
        U.store_h(False)
    return fin(k, name, 120)


def out_kernel():
    name = "out_kernel"
    k = new_kernel(name)
    prologue(k, [("WS", SRD_WS), ("BX", SRD_BX), ("CRE", SRD_CRE), ("CIM", SRD_CIM), ("WO", SRD_WO), ("OUT", SRD_OUT)], [("DSK", P_DSK)])
    V = dict(t0=2, t1=3, t2=4, HD=5, C0=6, C1=7, AA=8, BA=9, af=16, bf=24, Y=32, xs=48, dsk=52, db=56, red=60,
             WD=13, WA=14, Og=68, ACC=32, wf=16, SRD_CSEL=72)
    Y = YGemm(k, V, 0, 2)
    O = OutProj(k, V, 65536)
    O.setup_and_dma()
    Y.setup()
    Y.skip_loads()
    Y.gemm_standalone()
    Y.skip_mm()
    k("s_nop 0")
    reduce_and_store(k, V, V["Y"], 131072, 512)
    O.frag_addr()
    O.o_loads()
    k.wait_vm("WO")
    k("s_barrier")
    O.mm()
    reduce_and_store(k, V, V["ACC"], 131072 + 16384, 0)
    return fin(k, name, 136)


def build():
    launches = [("qkv_kernel", 160 * 1024), ("attn_kernel", 65536), ("ssm1_kernel", 3 * SsmU.CH + 4096),
                ("ssm2_kernel", 3 * SsmU.CH + 4096), ("out_kernel", 160 * 1024)]
    s = HEADER
    for n, lds in launches:
        s += f"; @launch kernel={n} grid=(256,1,1) block=(512,1,1) lds={lds}\n"
    s += '.amdgcn_target "amdgcn-amd-amdhsa--gfx950"\n'
    s += qkv_kernel() + attn_kernel() + ssm_kernel(1) + ssm_kernel(2) + out_kernel()
    return s


if __name__ == "__main__":
    out = sys.argv[1] if len(sys.argv) > 1 else "multi.s"
    open(out, "w").write(build())
    print("wrote", out)
```
